```python
import torch

def _softmax(x, axis=-1):
    return torch.softmax(x, dim=axis)
def _gelu(x):
    return torch.nn.functional.gelu(x, approximate="tanh")
def _silu(x):
    return torch.nn.functional.silu(x)
def _sigmoid(x):
    return torch.sigmoid(x)
def _layernorm(x, axis=-1, eps=1e-5):
    m = x.mean(dim=axis, keepdim=True)
    v = x.var(dim=axis, keepdim=True, unbiased=False)
    return (x - m) / torch.sqrt(v + eps)
def _scatter_add(tgt, idx, src, axis=0):
    return tgt.clone().index_add_(axis, idx, src)
def _segment_sum(src, seg, n):
    out = torch.zeros((n,) + src.shape[1:], dtype=src.dtype)
    return out.index_add_(0, seg, src)
def _pad(x, pw):
    flat = tuple(v for pair in reversed(pw) for v in pair)
    return torch.nn.functional.pad(x, flat)

kernel_name = 'standalone__linear_attn_elu__prompt'

def setup_inputs():

    _w = (lambda a: (lambda t: t.to(torch.bfloat16) if t.is_floating_point() else t)(torch.as_tensor(a)))
    B, H, S, D = 1, 32, 2048, 128
    return {
        "q": _w((lambda *s: torch.randn(*s, dtype=torch.bfloat16) * 0.05)(B, H, S, D)),
        "k": _w((lambda *s: torch.randn(*s, dtype=torch.bfloat16) * 0.05)(B, H, S, D)),
        "v": _w((lambda *s: torch.randn(*s, dtype=torch.bfloat16) * 0.05)(B, H, S, D)),
    }

def reference(q, k, v):
    phi_q = torch.where(q > 0, q + 1, torch.exp(q)) + 1e-6
    phi_k = torch.where(k > 0, k + 1, torch.exp(k)) + 1e-6
    kv = torch.einsum("bhsd,bhse->bhde", phi_k, v)
    z = torch.einsum("bhsd->bhd", phi_k)
    num = torch.einsum("bhqd,bhde->bhqe", phi_q, kv)
    den = torch.einsum("bhqd,bhd->bhq", phi_q, z)[..., None] + 1e-6
    return num / den
```

```python
import sys, argparse
ap = argparse.ArgumentParser()
ap.add_argument("-o", default="out.s")
ap.add_argument("--stamps", type=int, default=0)
ap.add_argument("--stw", type=int, default=0)
ap.add_argument("--kf", default="nt"); ap.add_argument("--vf", default="nt")
ap.add_argument("--qf", default="nt"); ap.add_argument("--of", default="nt")
ap.add_argument("--D", type=int, default=4)
ap.add_argument("--NS", type=int, default=11)
ap.add_argument("--qpre", default="L0,L1,L2,L3")
ap.add_argument("--tail", default="late,zf,R0,P0,ce,z,pl,L4,L5,L6,L7,P1,fin,Z,R1,P2,P3,g,R2,P4,P5,R3,P6,P7,G")
ap.add_argument("--post", default="")
ap.add_argument("--ord", type=int, default=1)
ap.add_argument("--fp", type=int, default=4)
ap.add_argument("--fc", type=int, default=7)
ap.add_argument("--prio", type=int, default=0)
ap.add_argument("--rot", type=int, default=0)
ap.add_argument("--clr", default="0,1,1")
ap.add_argument("--exp", default="")
ap.add_argument("--xl", default="sc1")
ap.add_argument("--xs", default="")
ap.add_argument("--xc", default="")
ap.add_argument("--mb", default="out")
ap.add_argument("--nost", default="m0,q1,m1")
ap.add_argument("--xp", type=int, default=16)
ap.add_argument("--qk", type=int, default=0)
ap.add_argument("--seq2", default="V8+V9,V10+V11,V12+V13,V14,V15,L0,L1,L2,L3,-,-,-")
ap.add_argument("--ph2", default="")
ap.add_argument("--xe", default="")
ap.add_argument("--xes", default="")
ap.add_argument("--zs", type=int, default=14)
ap.add_argument("--zfs", type=int, default=99)
ap.add_argument("--pk", type=int, default=1)
ap.add_argument("--clk", default="")
ap.add_argument("--grp", default="2,2,2,2")
ap.add_argument("--es", type=int, default=0)
ap.add_argument("--pf", default="-,-,-")
ap.add_argument("--pff", default="sc1")
ap.add_argument("--xg", default=None)
ap.add_argument("--xz", default=None)
ap.add_argument("--lo", type=int, default=0)
A = ap.parse_args()
if A.xg is None: A.xg = A.xl
if A.xz is None: A.xz = A.xl

L = []
def e(s=""): L.append("    " + s)
def lab(s): L.append(s + ":")
def c(s): L.append("    ; " + s)
HDR = """; Kernarg layout for this problem (48 bytes, ptrs only, base s[0:1]):
;   offset  24: d_out     shape=(1, 32, 2048, 128) dtype=bfloat16
;   offset  40: d_ws      268435456 bytes workspace
"""
NB = 16777216; STOFF = 128 << 20
sK, sV, sQ, sO, sW = "s[8:11]", "s[12:15]", "s[16:19]", "s[20:23]", "s[24:27]"
sX = "s[96:99]"
NAME = "standalone__linear_attn_elu__prompt_kernel"
D, NS = A.D, A.NS
CLR = [int(x) for x in A.clr.split(",")]
VB = 65536; KVL = VB + min(NS, 7)*8192; ZL = KVL + 32768; ML = ZL + 256; LDS = ML + 16
oF, oZ, oFlag = 16 << 20, 20 << 20, (20 << 20) + 65536
X32 = A.xp == 32; RS = 14 if X32 else 13
oL = oF + (8192 if X32 else 4096)
QK = A.qk
qslot = lambda q: KVL + q*8192 if q < QK else (q - QK)*8192
ALT = 32 << 20
QB = 224
BOUND = 0x4000

vm = []
def vop(tag, s): vm.append(tag); e(s)
def vwait(tag):
    if tag not in vm: return
    idx = max(i for i, t in enumerate(vm) if t == tag)
    e(f"s_waitcnt vmcnt({len(vm) - 1 - idx})")
    del vm[:idx+1]

stnames = []
def stamp(n):
    if not A.stamps or n in A.nost.split(","): return
    if n not in stnames: stnames.append(n)
    i = stnames.index(n); assert i < A.stamps
    e(f"s_memrealtime s[{64+2*i}:{65+2*i}]")
    if A.clk and n == A.clk.split(",")[0]: e("s_memtime s[100:101]")
    if A.clk and n in A.clk.split(",")[1:]:
        stnames.append("C" + n); i += 1
        e(f"s_memtime s[{64+2*i}:{65+2*i}]"); e("s_waitcnt lgkmcnt(0)")
        e(f"s_sub_u32 s{64+2*i}, s{64+2*i}, s100"); e(f"s_add_u32 s{64+2*i}, s{64+2*i}, s64"); e(f"s_addc_u32 s{65+2*i}, s65, 0")
    e("s_waitcnt lgkmcnt(0)")
def stamps_out():
    c("diagnostic stamps")
    e(f"s_cmp_lg_u32 s4, {A.stw}"); e(f"s_cbranch_scc1 {NAME}_end")
    e(f"s_mul_i32 s5, s2, {8*A.stamps}"); e(f"s_add_u32 s5, s5, {STOFF}")
    e("v_mov_b32 v2, 0"); e("s_mov_b64 exec, 1")
    for i in range(A.stamps):
        j = min(i, len(stnames)-1)
        e(f"v_mov_b32 v4, s{64+2*j}"); e(f"v_mov_b32 v5, s{65+2*j}")
        e(f"buffer_store_dwordx2 v[4:5], v2, {sW}, s5 offen offset:{8*i}"); e("s_nop 1")

def phi(src, dst, x=28, t=36, pk=0):
    u = []; o = []
    for i in range(4):
        u.append(f"v_lshlrev_b32 v{x+2*i}, 16, v{src+i}")
        u.append(f"v_and_b32 v{x+2*i+1}, s32, v{src+i}")
    if pk:
        for i in range(0, 8, 2): o.append(f"v_pk_mul_f32 v[{t+i}:{t+i+1}], v[{x+i}:{x+i+1}], s[30:31] op_sel_hi:[1,0]")
    else:
        for i in range(8): o.append(f"v_mul_f32 v{t+i}, s30, v{x+i}")
    for i in range(8):
        o.append(f"v_exp_f32_e64 v{t+i}, v{t+i} clamp")
        o.append(f"v_max_f32 v{x+i}, s31, v{x+i}")
    if pk:
        for i in range(0, 8, 2): o.append(f"v_pk_add_f32 v[{x+i}:{x+i+1}], v[{t+i}:{t+i+1}], v[{x+i}:{x+i+1}]")
    else:
        for i in range(8): o.append(f"v_add_f32 v{x+i}, v{t+i}, v{x+i}")
    for i in range(4): o.append(f"v_cvt_pk_bf16_f32 v{dst+i}, v{x+2*i}, v{x+2*i+1}")
    return u, o
uid = [0]
def slow(loop):
    uid[0] += 1
    e("s_add_u32 s54, s54, 1"); e("s_and_b32 s5, s54, 63"); e(f"s_cbranch_scc1 {loop}")
    e("v_mov_b32 v126, s34"); e("v_mov_b32 v127, s33"); e("s_mov_b64 exec, 1")
    e("global_store_byte v126, v127, s[28:29] sc1"); e("s_mov_b64 exec, -1")

L.append(f".globl {NAME}\n.p2align 8\n.type {NAME},@function")
lab(NAME)
e("s_cmp_ge_u32 s2, 256"); e(f"s_cbranch_scc1 {NAME}_end")
e("s_load_dwordx4 s[36:39], s[0:1], 0")
e("s_load_dwordx4 s[40:43], s[0:1], 16")
e("s_load_dwordx4 s[44:47], s[0:1], 32")
if A.stamps: e("s_memrealtime s[64:65]"); stnames.append("start")
e("v_lshrrev_b32 v2, 6, v0"); e("v_and_b32 v1, 63, v0"); e("v_readfirstlane_b32 s4, v2")
c("u = (id&7)*32 + (id>>3); head = u>>3; j = u&7; dh = j>>2; sq = j&3; late e half = sq&1; own d sub = sq>>1")
e("s_and_b32 s5, s2, 7"); e("s_lshl_b32 s5, s5, 5"); e("s_lshr_b32 s6, s2, 3")
e("s_add_u32 s34, s5, s6"); e("s_and_b32 s7, s34, 7"); e("s_lshr_b32 s35, s34, 3")
e("s_lshl_b32 s33, s35, 19")
e("s_and_b32 s5, s7, 3"); e("s_lshl_b32 s5, s5, 17"); e("s_add_u32 s33, s33, s5")
e("s_lshl_b32 s5, s4, 11"); e("s_add_u32 s33, s33, s5")
e("s_lshr_b32 s5, s7, 2"); e("s_lshl_b32 s5, s5, 7"); e("s_add_u32 s48, s33, s5")
e("s_and_b32 s5, s7, 1"); e("s_lshl_b32 s5, s5, 7"); e("s_add_u32 s50, s33, s5")
e("s_xor_b32 s49, s50, 128")
e("s_lshl_b32 s55, s4, 10"); e(f"s_add_u32 s55, s55, {VB}")
for r in (10, 14, 18, 22): e(f"s_mov_b32 s{r}, {NB}")
e("s_mov_b32 s26, 0x10000000")
for r in (11, 15, 19, 23, 27): e(f"s_mov_b32 s{r}, 0x20000")
e("v_lshrrev_b32 v8, 3, v1")
e("v_and_b32 v10, 7, v1")
e("v_lshlrev_b32 v9, 4, v10"); e("v_lshl_add_u32 v2, v8, 8, v9")
e("v_and_b32 v9, 6, v8"); e("v_lshlrev_b32 v9, 4, v9"); e("v_xor_b32 v3, v2, v9")
e("s_lshl_b32 s56, s35, 11")
e("s_lshl_b32 s51, s4, 8"); e("s_add_u32 s51, s51, s56")
e("s_lshl_b32 s52, s34, 8")
if A.rot:
    e(f"s_mul_i32 s5, s35, {A.rot}"); e("s_and_b32 s5, s5, 7"); e("s_lshl_b32 s5, s5, 14")
    for r in (48, 49, 50): e(f"s_add_u32 s{r}, s{r}, s5")
if "lin" in A.exp:
    e("v_mov_b32 v200, v2"); e("v_lshlrev_b32 v2, 4, v1"); e("v_mov_b32 v3, v2")
    for r in (48, 49, 50):
        e(f"s_and_b32 s5, s{r}, 128"); e("s_lshl_b32 s5, s5, 6"); e(f"s_andn2_b32 s{r}, s{r}, 0x3fff"); e(f"s_add_u32 s{r}, s{r}, s5")
        e("s_lshl_b32 s5, s4, 10"); e(f"s_add_u32 s{r}, s{r}, s5")
e(f"v_mov_b32 v11, {oFlag}")
e("s_waitcnt lgkmcnt(0)")
for d, s in ((8, 38), (12, 40), (24, 46), (16, 36), (20, 42), (28, 44)):
    e(f"s_mov_b32 s{d}, s{s}"); e(f"s_mov_b32 s{d+1}, s{s+1}")

e(f"s_mov_b32 s96, s{42 if A.mb == 'out' else 46}"); e(f"s_mov_b32 s97, s{43 if A.mb == 'out' else 47}")
e(f"s_mov_b32 s98, {NB}"); e("s_mov_b32 s99, 0x20000")
NKB = (D + 1) // 2
kb = lambda i: 16 + 4*(i % NKB)
assert NKB <= 3
def q_load(i):
    if "noq" in A.exp: return
    off = (i >> 2)*4096 + ((i >> 1) & 1)*128
    if "qlin" in A.exp: off = (i >> 1)*2048
    e(f"s_add_u32 m0, s92, {qslot(i)}"); e(f"s_add_u32 s5, s3, {off}")
    vop(f"L{i}", f"buffer_load_dwordx4 v{220 + (i & 1)}, {sQ}, s5 offen {A.qf} lds")
def q_read(p):
    r, o = (222, p*16384) if 2*p < QK else (q_read.r, p*16384 - QK*8192)
    for k in range(2): e(f"ds_read_b128 v[{QB+8*p+4*k}:{QB+8*p+4*k+3}], v{r+k} offset:{o}")
q_read.r = 218
def adv(s):
    if A.rot:
        e(f"s_add_u32 s5, {s}, 16384"); e("s_and_b32 s5, s5, 0x1c000"); e(f"s_andn2_b32 {s}, {s}, 0x1c000"); e(f"s_or_b32 {s}, {s}, s5")
    else: e(f"s_add_u32 {s}, {s}, 16384")
def issue(it, stage):
    if it == "-": return
    k, i = it[0], int(it[1:])
    if k == "K":
        vop(it, f"buffer_load_dwordx4 v[{kb(i)}:{kb(i)+3}], v2, {sK}, s48 offen {A.kf}")
        if i < 7: adv("s48")
    elif k == "V":
        assert i - NS <= stage - 2
        s = "s49" if i < 8 else "s50"
        e(f"s_add_u32 m0, s55, {(i % NS)*8192}"); e("s_nop 0")
        vop(it, f"buffer_load_dwordx4 v3, {sV}, {s} offen {A.vf} lds")
        if i not in (7, 15): adv(s)
    else:
        assert QK == 0 and i <= stage - 2
        q_load(i)
seq = [x for i in range(8) for x in (f"K{i}", f"V{i}")] + [f"V{i}" for i in range(8, 16)]
qpre = A.qpre.split(","); assert len(qpre) == D
seq += qpre
if A.seq2: seq = seq[:16] + A.seq2.split(","); assert len(seq) == 24 + D
nxt = [0]
def issue_next(stage):
    for it in seq[nxt[0]].split("+"): issue(it, stage)
    nxt[0] += 1
for _ in range(D): issue_next(0)
vop("snap", f"buffer_load_dword v130, v11, {sW}, s51 offen sc1")
e("s_getreg_b32 s33, hwreg(HW_REG_XCC_ID, 0, 4)")
e(f"v_mov_b32 v132, {ML}"); e("v_mov_b32 v133, 0"); e("ds_write_b32 v132, v133")
e("v_mov_b32 v131, s33"); e("s_or_b32 s33, s33, 0x80"); e("s_lshl_b32 s92, s4, 10")
e("v_lshlrev_b32 v9, 4, v1")
for i in range(4): e(f"v_mov_b32 v{104+i}, -1")
def clears(stage):
    if "noclr" in A.exp: return
    for r in range(2 + A.es):
        if CLR[r] != stage: continue
        c("reset the mailboxes of this workgroup")
        if r == 0 and A.lo:
            e(f"s_lshl_b32 s5, s34, {RS}"); e("s_lshl_b32 s6, s4, 9"); e("s_add_u32 s5, s5, s6"); e(f"s_add_u32 s5, s5, {oF}")
            e("s_mov_b32 exec_hi, 0")
            vop("clr", f"buffer_store_dwordx4 v[104:107], v9, {sW}, s5 offen {A.xc}")
            vop("clr", f"buffer_store_dwordx4 v[104:107], v9, {sX}, s62 offen {A.xc}")
            e("s_mov_b64 exec, -1")
        elif r == 0:
            e(f"s_lshl_b32 s5, s34, {RS}"); e("s_add_u32 s5, s5, s92"); e(f"s_add_u32 s5, s5, {oL if X32 else oF}")
            vop("clr", f"buffer_store_dwordx4 v[104:107], v9, {sW}, s5 offen {A.xc}")
        elif r == 2:
            assert not X32
            vop("clr", f"buffer_store_dwordx4 v[104:107], v9, {sX}, s59 offen {A.xc}")
        else:
            if X32:
                e(f"s_add_u32 s5, s52, {oZ}"); e(f"s_lshl_b32 s6, s34, {RS}"); e("s_add_u32 s6, s6, s92"); e(f"s_add_u32 s6, s6, {oF}")
                e("s_cmp_lt_u32 s4, 4"); e("s_cselect_b32 s5, s6, s5"); e("s_cselect_b64 exec, -1, 0xffff")
            else:
                e(f"s_add_u32 s5, s52, {oZ}"); e("s_lshl_b32 s6, s4, 5"); e("s_add_u32 s5, s5, s6"); e("s_mov_b64 exec, 3")
            vop("clr", f"buffer_store_dwordx4 v[104:107], v9, {sW}, s5 offen {A.xc}"); e("s_mov_b64 exec, -1")
def prefetch(stage):
    for r, x in enumerate(A.pf.split(",")):
        if x != str(stage): continue
        c("bring the mailbox lines into L2")
        if r == 0:
            e(f"s_lshl_b32 s5, s34, {RS}"); e("s_add_u32 s5, s5, s92"); e(f"s_add_u32 s5, s5, {oF}")
            vop("pf", f"buffer_load_dword v204, v9, {sW}, s5 offen {A.pff}")
        elif r == 1:
            e(f"s_add_u32 s5, s52, {oZ}"); e("s_mov_b64 exec, 0x101")
            vop("pf", f"buffer_load_dword v205, v9, {sW}, s5 offen {A.pff}"); e("s_mov_b64 exec, -1")
        else: vop("pf", f"buffer_load_dword v206, v9, {sX}, s59 offen {A.pff}")
e("s_mov_b32 s30, 0x3fb8aa3b"); e("s_mov_b32 s31, 0x358637bd"); e("s_mov_b32 s32, 0xffff0000")
e("s_mov_b32 s54, 0")
e("s_lshl_b32 s3, s34, 16"); e("s_lshl_b32 s5, s4, 13"); e("s_add_u32 s3, s3, s5")
c("ds = w>>2 ; eT = w&3")
e("s_lshr_b32 s57, s4, 2"); e("s_and_b32 s58, s4, 3")
e("s_cmp_eq_u32 s58, s57"); e("s_cselect_b32 s53, 1, 0")
c("phi(K) write addresses v4,v5")
e("v_lshrrev_b32 v13, 1, v8"); e("v_and_b32 v14, 1, v8"); e("v_xor_b32 v13, v13, v14")
e("v_lshrrev_b32 v14, 2, v10"); e("v_lshlrev_b32 v14, 1, v14"); e("v_xor_b32 v13, v13, v14")
e("v_and_b32 v14, 3, v1"); e("v_lshlrev_b32 v14, 3, v14")
e("v_lshl_add_u32 v13, v13, 5, v14"); e("v_lshl_add_u32 v13, v8, 7, v13")
e("s_lshl_b32 s5, s4, 10"); e("v_add_u32 v4, s5, v13"); e("v_xor_b32 v5, 32, v4")
c("fragment read addresses: row = l>>2 ; A v6,v7 ; B v8")
e("v_lshrrev_b32 v13, 2, v1"); e("v_lshl_add_u32 v14, v13, 7, v14")
e("v_bfe_u32 v15, v1, 3, 2")
e("v_xor_b32 v8, s58, v15"); e("v_lshl_add_u32 v8, v8, 5, v14"); e(f"v_add_u32 v8, {VB}, v8")
if NS > 7: e("v_add_u32 v216, 0x8000, v8"); assert NS <= 11 and 15 % NS < 7 and QK == 0
e("v_and_b32 v13, 1, v13"); e("v_xor_b32 v15, v15, v13")
e("s_lshl_b32 s5, s57, 1"); e("v_xor_b32 v15, s5, v15"); e("v_lshl_add_u32 v6, v15, 5, v14"); e("v_xor_b32 v7, 32, v6")
c("Q addresses v124,v125")
e("v_lshrrev_b32 v13, 4, v1"); e("v_lshlrev_b32 v13, 4, v13"); e(f"v_xor_b32 v220, v{200 if 'lin' in A.exp else 2}, v13")
e("v_xor_b32 v221, 64, v220"); e("v_add_u32 v221, 2048, v221")
if "qlin" in A.exp: e("v_lshlrev_b32 v220, 4, v1"); e("v_add_u32 v221, 1024, v220")
c("Q fragment addresses v218,v219")
e("v_bfe_u32 v13, v1, 3, 1"); e("v_lshlrev_b32 v13, 13, v13"); e("v_lshl_add_u32 v13, v10, 7, v13")
e("v_bfe_u32 v14, v1, 1, 3"); e("v_lshrrev_b32 v15, 4, v1"); e("v_xor_b32 v14, v14, v15")
e("v_lshl_add_u32 v13, v14, 4, v13"); e("v_add_u32 v218, s92, v13"); e("v_xor_b32 v219, 64, v218")
if QK: e(f"v_add_u32 v222, {KVL}, v218"); e(f"v_add_u32 v223, {KVL}, v219")
c("lanes that keep their columns: s[60:61]; final position v10; early out v136, early in v137, late v138")
e("s_bfe_u32 s6, s7, 0x10001"); e("s_lshl_b32 s5, s6, 3"); e("s_lshl_b32 s60, 0x00ff00ff, s5"); e("s_mov_b32 s61, s60")
e("s_and_b32 s5, s7, 1"); e("s_lshl_b32 s5, s5, 2"); e("s_or_b32 s5, s5, s6"); e("s_and_b32 s59, s58, 2"); e("s_or_b32 s5, s5, s59")
e("v_xor_b32 v13, s5, v10"); e("v_lshlrev_b32 v13, 4, v13")
e("v_lshrrev_b32 v14, 4, v1"); e("v_lshlrev_b32 v138, 4, v10"); e("v_lshl_add_u32 v10, v14, 9, v13")
e("v_lshl_add_u32 v138, v14, 7, v138")
e("v_bfe_u32 v13, v1, 3, 1"); e("v_lshl_add_u32 v136, v13, 9, v138")
e("v_xor_b32 v13, s6, v13"); e("v_lshl_add_u32 v139, v13, 9, v138"); e("v_lshlrev_b32 v13, 17, v13")
e("s_lshl_b32 s59, s34, 16"); e("s_add_u32 s59, s59, s92")
if X32: e("s_add_u32 s59, s59, s92")
e("s_lshl_b32 s6, s6, 9"); e("s_add_u32 s6, s6, s59"); e(f"s_xor_b32 s6, s6, {1 << 16}")
e("v_xor_b32 v13, s6, v13"); e("v_add_u32 v137, v13, v138")
c("mailbox offsets: s59 early out, s62 late out, s95 late in, s63 final out")
e(f"s_lshl_b32 s63, s34, {RS}"); e(f"s_lshl_b32 s5, s4, {RS - 4}"); e("s_add_u32 s62, s63, s5"); e(f"s_add_u32 s62, s62, {oL}")
if A.lo:
    assert not X32 and not A.es
    e("s_lshl_b32 s62, s34, 16"); e("s_add_u32 s62, s62, s5"); e("s_add_u32 s62, s62, 8192")
e(f"s_xor_b32 s95, s62, {2 << (16 if A.lo else RS)}")
e("s_lshl_b32 s5, s58, 7"); e("s_add_u32 s63, s63, s5"); e("s_lshl_b32 s5, s57, 11"); e("s_add_u32 s63, s63, s5"); e(f"s_add_u32 s63, s63, {oF}")
c("z mailboxes of the two early producers: v134")
if not A.es:
    e("v_and_b32 v134, 1, v1"); e("v_lshlrev_b32 v134, 9, v134"); e("s_xor_b32 s5, s52, 256"); e("v_xor_b32 v134, s5, v134")
    e(f"s_mov_b32 s93, {oZ}")
clears(-1)
for i in range(4): e(f"v_mov_b32 v{120+i}, 0x3f803f80")

AR = [224, 240, 48, 64, 140, 156, 172, 188]
af = lambda i, ks, a: AR[i] + 8*ks + 4*a
bf = lambda s, ks: 80 + 8*s + 4*ks
def rdA(ii):
    for ks in range(2):
        for a in range(2):
            for hh in range(2):
                r = af(ii, ks, a) + 2*hh
                e(f"ds_read_b64_tr_b16 v[{r}:{r+1}], v{6+a} offset:{ii*8192 + ks*4096 + hh*2048}")
def rdB(i, s):
    for ks in range(2):
        for hh in range(2):
            r = bf(s, ks) + 2*hh
            a, o = (216, i % NS - 4) if i % NS > 7 else (8, i % NS)
            e(f"ds_read_b64_tr_b16 v[{r}:{r+1}], v{a} offset:{o*8192 + ks*4096 + hh*2048}")
def mf(acc, i, s, ks, a, first, b=None):
    d = acc + 4*a; b = bf(s, ks) if b is None else b
    return f"v_mfma_f32_16x16x32_bf16 v[{d}:{d+3}], v[{af(i,ks,a)}:{af(i,ks,a)+3}], v[{b}:{b+3}], " + ("0" if first else f"v[{d}:{d+3}]")
def zmf(i):
    e("s_cmp_eq_u32 s53, 0"); e(f"s_cbranch_scc1 {NAME}_nz{i}")
    for ks in range(2):
        for a in range(2): e(mf(112, i, 0, ks, a, i == 0 and ks == 0, 120))
    lab(f"{NAME}_nz{i}")
def zf_load(): vop("zf", f"buffer_load_dword v135, v134, {sW}, s93 offen {A.xz}")
def flag_ops(i):
    if i == A.fc: vop("flag", f"buffer_load_dwordx2 v[128:129], v11, {sW}, s51 offen sc1")
    if i == A.zfs: assert flag_check.done and flag_check.at < i; zf_load()
def flag_check(i):
    if "flag" in vm or flag_check.done or not flag_check.armed: return
    flag_check.done = True; flag_check.at = i
    c("peer w has reset its mailboxes, and shares this L2?")
    e("v_cmp_eq_u64 vcc, v[128:129], v[130:131]"); e(f"s_cbranch_vccz {NAME}_fslow"); lab(f"{NAME}_fok")
def mode_read(i):
    if flag_check.done and flag_check.at == i: e("ds_read_b32 v133, v132")
def z_store(fl, lb):
    e("s_cmp_eq_u32 s53, 0"); e(f"s_cbranch_scc1 {NAME}_{lb}")
    e("v_lshlrev_b32 v14, 1, v1"); e("s_lshl_b32 s5, s57, 7"); e("s_add_u32 s5, s5, s52"); e(f"s_add_u32 s5, s5, {oZ}")
    e("v_min_u32 v112, -2, v112"); e("v_min_u32 v116, -2, v116")
    e("s_mov_b32 exec_lo, 0x10001"); e("s_mov_b32 exec_hi, 0x10001")
    e(f"buffer_store_dwordx4 v[112:115], v14, {sW}, s5 offen {fl}")
    e(f"buffer_store_dwordx4 v[116:119], v14, {sW}, s5 offen offset:16 {fl}")
    e("s_mov_b64 exec, -1")
    lab(f"{NAME}_{lb}")
flag_check.done = False; flag_check.armed = False

done = set(); rdone = set(); lg = [False]
def qtok(t):
    if t[0] == "R":
        vwait(f"L{2*int(t[1])}"); vwait(f"L{2*int(t[1])+1}"); q_read(int(t[1])); rdone.add(int(t[1])); lg[0] = True
    else:
        f = int(t[1]); assert f >> 1 in rdone
        if lg[0]: e("s_waitcnt lgkmcnt(0)"); lg[0] = False
        u, o = phi(QB + 4*f, QB + 4*f, pk=A.pk & 1)
        for s in u + o: e(s)
        done.add(f)
for i in range(8):
    c(f"stage {i}")
    vwait(f"K{i}")
    if i in (0, 4): stamp(f"k{i}")
    u, o = phi(kb(i), 44)
    for s in u: e(s)
    issue_next(i)
    clears(i); prefetch(i)
    if i > 0:
        for s in o[:8]: e(s)
        e("s_waitcnt lgkmcnt(0)")
        M = [mf(96, i - 1, 0, ks, a, i == 1 and ks == 0) for ks in range(2) for a in range(2)]
        for k in range(4):
            e(M[k])
            for s in o[8+4*k:12+4*k]: e(s)
        zmf(i - 1)
        for s in o[24:]: e(s)
    else:
        for s in o: e(s)
    e(f"ds_write_b64 v4, v[44:45] offset:{i*8192}")
    e(f"ds_write_b64 v5, v[46:47] offset:{i*8192}")
    vwait(f"V{i}")
    flag_check(i); flag_ops(i); flag_check.armed |= (i == A.fc)
    issue_next(i)
    e("s_waitcnt lgkmcnt(0)"); e("s_barrier")
    mode_read(i)
    rdA(i); rdB(i, 0)
    if i == A.fp:
        assert "clr" not in vm and "snap" not in vm
        e("v_not_b32 v130, v130")
        e("s_cmp_lg_u32 s4, s7"); e(f"s_cbranch_scc1 {NAME}_nopub")
        e("s_mov_b64 exec, 1"); e(f"buffer_store_dwordx2 v[130:131], v11, {sW}, s52 offen sc1"); e("s_mov_b64 exec, -1")
        lab(f"{NAME}_nopub")
stamp("v7")
e("s_waitcnt lgkmcnt(0)")
for ks in range(2):
    for a in range(2): e(mf(96, 7, 0, ks, a, False))
zmf(7)
e("s_nop 5")
c("early partial")
if not X32:
    for i in range(4): e(f"v_cvt_pk_bf16_f32 v{96+i}, v{96+2*i}, v{97+2*i}")
    if A.es: e("v_min_u32 v96, -2, v96")
def e_store(fl):
    vop("E", f"buffer_store_dwordx4 v[96:99], v136, {sX}, s59 offen {fl}")
    if X32: vop("E", f"buffer_store_dwordx4 v[100:103], v136, {sX}, s59 offen offset:1024 {fl}")
e_store(A.xes)
gs = {}; g0 = 8
for x in A.grp.split(","): gs[g0] = g0 + int(x) - 1; glast = g0; g0 += int(x)
assert g0 == 16 and glast >= 11
eok = False
for i in range(8, 16):
    ii = i - 8; s = (ii + 1) & 1
    c(f"stage {i}")
    if i in gs:
        gend = gs[i]; vwait(f"V{gend}"); flag_check(i); eok = "E" not in vm
    flag_ops(i); flag_check.armed |= (i == A.fc)
    issue_next(i)
    if i in gs:
        e("s_waitcnt lgkmcnt(0)"); e("s_barrier")
        if i == glast: stamp("v15")
        mode_read(i)
        rdB(i, s)
    n = 0
    if i < gend: rdB(i + 1, s ^ 1); n = 4
    for ks in range(2):
        e(f"s_waitcnt lgkmcnt({n + 2 - 2*ks})")
        for a in range(2): e(mf(104, ii, s, ks, a, ii == 0 and ks == 0))
    if flag_check.done and (flag_check.at == i or (i == 8 and flag_check.at < 8)): e("v_readfirstlane_b32 s94, v133")
    if i == A.zs:
        assert A.es or eok
        c("z partial; its arrival also tells that the early partial is in place")
        z_store(A.xs, "nzs")
    for t in A.ph2.split(","):
        if t and int(t.split(":")[0]) == i: assert i >= 10; qtok(t.split(":")[1])
    if i == 14: assert all(p in rdone for p in range(QK // 2))
assert flag_check.done
c("phase-2 addresses: B v84..v91, z v13, out v14, verify v15")
def p2_addr():
    e("v_and_b32 v13, 15, v1"); e("v_lshrrev_b32 v14, 4, v1")
    e("v_lshrrev_b32 v12, 3, v13"); e("v_and_b32 v2, 1, v13")
    e("v_lshlrev_b32 v15, 12, v12"); e("v_lshl_add_u32 v15, v2, 13, v15"); e("v_lshl_add_u32 v15, v14, 9, v15")
    e("v_lshl_add_u32 v15, v2, 4, v15"); e("v_lshrrev_b32 v2, 2, v13"); e("v_lshl_add_u32 v15, v2, 5, v15")
    e("v_bfe_u32 v2, v1, 1, 2"); e("v_lshl_add_u32 v15, v2, 7, v15"); e(f"v_add_u32 v84, {KVL}, v15")
    e("v_mov_b32 v11, v218"); e("v_mov_b32 v12, v219"); q_read.r = 11
    for T in range(1, 8): e(f"v_xor_b32 v{84+T}, {T*16}, v84")
    e("v_lshlrev_b32 v2, 4, v13"); e("v_lshlrev_b32 v13, 4, v14"); e(f"v_add_u32 v13, {ZL}, v13")
    e("v_lshl_add_u32 v14, v14, 10, v2")
    e("s_lshl_b32 s55, s4, 12"); e(f"s_add_u32 s55, s55, {KVL}"); e("v_add_u32 v15, s55, v9")
    e(f"s_lshl_b32 s51, s51, {RS - 8}"); e(f"s_add_u32 s51, s51, {oF}")
tailcode = []
def l_store(fl):
    if X32:
        e("s_not_b64 exec, s[60:61]"); e("v_min_u32 v104, -2, v104"); e("v_min_u32 v108, -2, v108")
        for p in range(2): vop("Lt", f"buffer_store_dwordx4 v[{104+4*p}:{107+4*p}], v138, {sW}, s62 offen offset:{p*512} {fl}")
        e("s_mov_b64 exec, -1")
        return
    for i in range(4): e(f"v_cvt_pk_bf16_f32 v{100+i}, v{104+2*i}, v{105+2*i}")
    e("v_min_u32 v100, -2, v100"); e("s_not_b64 exec, s[60:61]")
    vop("Lt", f"buffer_store_dwordx4 v[100:103], v138, {sX if A.lo else sW}, s62 offen {fl}"); e("s_mov_b64 exec, -1")
def tail(role, toks):
    first = True
    def polls():
        vop("poll", f"buffer_load_dwordx4 v[156:159], v{139 if X32 else 138}, {sX if A.lo else sW}, s95 offen {A.xl}")
    def gath():
        e("s_mov_b32 m0, s55"); e("s_nop 0")
        for p in range(4): vop("g", f"buffer_load_dwordx4 v9, {sW}, s51 offen offset:{p*1024} {A.xg} lds")
    def zld(tag):
        e(f"s_add_u32 s6, s56, {oZ}")
        for q in range(4):
            e(f"buffer_load_dwordx4 v[{48+4*q}:{51+4*q}], v64, {sW}, s6 offen offset:{q*256} {A.xz}")
    def retry(name, reissue):
        global L
        keep = L; L = tailcode; sv = list(vm)
        lab(f"{NAME}_{name}_r"); slow(f"{NAME}_{name}_i")
        e(f"s_cmp_ge_u32 s54, {BOUND}"); e(f"s_cbranch_scc1 {NAME}_{name}_ok")
        lab(f"{NAME}_{name}_i"); reissue(); e("s_waitcnt vmcnt(0)"); e(f"s_branch {NAME}_{name}_c")
        L = keep; vm[:] = sv
    for t in toks:
        if t == "late":
            c("late partial"); e("s_nop 4"); l_store(A.xs); lab(f"{NAME}_snd2")
            continue
        if first and t[0] != "L": first = False; p2_addr()
        if t[0] == "L": q_load(int(t[1]))
        elif t[0] in "RP": qtok(t)
        elif t == "zf": zf_load()
        elif t == "ce":
            if not A.es:
                vwait("zf"); lab(f"{NAME}_ce_c")
                e("v_cmp_eq_u32 vcc, -1, v135"); e(f"s_cbranch_vccnz {NAME}_ce_r"); lab(f"{NAME}_ce_ok")
                retry("ce", zf_load)
            if X32:
                for p in range(2): vop("e", f"buffer_load_dwordx4 v[{148+4*p}:{151+4*p}], v137, {sX}, 0 offen offset:{p*1024} {A.xe}")
            else: vop("e", f"buffer_load_dwordx4 v[140:143], v137, {sX}, 0 offen {A.xe}")
        elif t == "pl": stamp("a"); polls()
        elif t == "fin":
            def unp(r):
                for i in range(4): e(f"v_lshlrev_b32 v{148+2*i}, 16, v{r+i}"); e(f"v_and_b32 v{149+2*i}, s32, v{r+i}")
            vwait("e")
            if A.es:
                lab(f"{NAME}_ce_c")
                e("v_cmp_eq_u32 vcc, -1, v140"); e(f"s_cbranch_vccnz {NAME}_ce_r"); lab(f"{NAME}_ce_ok")
                retry("ce", lambda: e(f"buffer_load_dwordx4 v[140:143], v137, {sX}, 0 offen sc1"))
            if not X32: unp(140)
            for i in range(8): e(f"v_add_f32 v{104+i}, v{104+i}, v{148+i}")
            for i in range(8): e(f"v_add_f32_dpp v{104+i}, v{148+i}, v{104+i} row_ror:8 row_mask:0xf bank_mask:0xf")
            vwait("poll"); lab(f"{NAME}_fin_c")
            e("v_cmp_eq_u32 vcc, -1, v156"); e(f"s_cbranch_vccnz {NAME}_fin_r"); lab(f"{NAME}_fin_ok")
            retry("fin", polls)
            stamp("b")
            if X32:
                for i in range(4): e(f"v_add_f32 v{104+i}, v{104+i}, v{156+i}")
                for i in range(4): e(f"v_add_f32_dpp v{108+i}, v{156+i}, v{108+i} row_ror:8 row_mask:0xf bank_mask:0xf")
            else:
                unp(156)
                for i in range(8): e(f"v_add_f32 v{104+i}, v{104+i}, v{148+i}")
            for i in range(4): e(f"v_cvt_pk_bf16_f32 v{76+i}, v{104+2*i}, v{105+2*i}")
            e("v_min_u32 v76, -2, v76"); e("s_mov_b64 exec, s[60:61]")
            e("s_cmp_lg_u32 s94, 0"); e(f"s_cbranch_scc1 {NAME}_fsc")
            vop("F", f"buffer_store_dwordx4 v[76:79], v10, {sW}, s63 offen {A.xs}")
            lab(f"{NAME}_fsc_x"); e("s_mov_b64 exec, -1")
        elif t == "z":
            e("s_cmp_lg_u32 s4, 7"); e(f"s_cbranch_scc1 {NAME}_z0")
            e("v_bfe_u32 v64, v1, 4, 1"); e("v_and_b32 v65, 0xf0, v9"); e("v_lshl_add_u32 v64, v64, 10, v65")
            zld(""); lab(f"{NAME}_z0"); vm.append("z"); zpos = True
        elif t == "Z":
            e("s_cmp_lg_u32 s4, 7"); e(f"s_cbranch_scc1 {NAME}_z1")
            if "z" in vm: e(f"s_waitcnt vmcnt({len(vm) - 1 - vm.index('z')})"); vm.remove("z")
            lab(f"{NAME}_zz_c")
            e("v_max3_u32 v72, v48, v52, v56"); e("v_max_u32 v72, v72, v60")
            e("v_cmp_eq_u32 vcc, -1, v72"); e(f"s_cbranch_vccnz {NAME}_zz_r"); lab(f"{NAME}_zz_ok")
            retry("zz", lambda: zld(""))
            for i in range(4): e(f"v_add_f32 v{48+i}, v{48+i}, v{52+i}")
            for i in range(4): e(f"v_add_f32 v{56+i}, v{56+i}, v{60+i}")
            for i in range(4): e(f"v_add_f32 v{48+i}, v{48+i}, v{56+i}")
            e("v_cvt_pk_bf16_f32 v48, v48, v49"); e("v_cvt_pk_bf16_f32 v49, v50, v51")
            e("v_and_b32 v65, 31, v1"); e("v_lshlrev_b32 v65, 3, v65"); e(f"v_add_u32 v65, {ZL}, v65")
            e("ds_write_b64 v65, v[48:49]")
            lab(f"{NAME}_z1")
        elif t == "g":
            stamp("c"); assert all(p in rdone for p in range(QK // 2))
            if lg[0]: e("s_waitcnt lgkmcnt(0)"); lg[0] = False
            e("s_cmp_lg_u32 s94, 0"); e(f"s_cbranch_scc1 {NAME}_gb2{role}"); lab(f"{NAME}_gb2{role}_x")
            gath()
        elif t == "G":
            vwait("g"); lab(f"{NAME}_g{role}_c")
            for p in range(4): e(f"ds_read_b32 v{72+p}, v15 offset:{p*1024}")
            e("s_waitcnt lgkmcnt(0)")
            e("v_max3_u32 v72, v72, v73, v74"); e("v_max_u32 v72, v72, v75")
            e("v_cmp_eq_u32 vcc, -1, v72"); e(f"s_cbranch_vccnz {NAME}_g{role}_r"); lab(f"{NAME}_g{role}_ok")
            retry(f"g{role}", gath)
            stamp("d")
        else: assert 0, t
    return done, rdone
_vw = vwait
def vwait(tag):
    if tag not in vm: return
    idx = max(i for i, t in enumerate(vm) if t == tag)
    n = sum(1 for t in vm[idx+1:] if t != "z")
    e(f"s_waitcnt vmcnt({n})")
    del vm[:idx+1]
e("s_cmp_lg_u32 s94, 0"); e(f"s_cbranch_scc1 {NAME}_fb1")
assert A.tail.startswith("late")
d0, rd0 = tail("o", A.tail.split(",")); vmo = vms = list(vm)
if A.prio:
    e("s_cmp_ge_u32 s4, 4"); e(f"s_cbranch_scc{2 - A.prio} {NAME}_join"); e("s_setprio 1"); lab(f"{NAME}_join")
rem = [q for q in range(8) if q not in d0]
assert "z" not in vm
def qphi(q):
    p = q >> 1
    if p not in rd0:
        rd0.add(p); vwait(f"L{2*p}"); vwait(f"L{2*p+1}")
        q_read(p); e("s_waitcnt lgkmcnt(0)")
    u, o = phi(QB + 4*q, QB + 4*q, pk=A.pk & 2)
    for s in u + o: e(s)
e("s_barrier")
stamp("kvin")
zf = [16, 20, 24, 44]
for t in range(4): e(f"ds_read_b128 v[{zf[t]}:{zf[t]+3}], v13 offset:{t*64}")
if A.ord == 0: frs = [(t, T) for t in range(4) for T in range(8)]
else: frs = [(t, 2*p + i) for p in range(4) for t in range(4) for i in range(2)]
DEPTH = 11
def rd(k):
    t, T = frs[k]; e(f"ds_read_b128 v[{96+4*k}:{99+4*k}], v{84+T} offset:{(t >> 1)*16384 + (t & 1)*2048}")
for k in range(DEPTH): rd(k)
for t in A.post.split(","):
    if t: q_load(int(t[1]))
acc = lambda T: 48 + 4*T
for R in range(2):
    rq = [q for q in rem if q >> 2 == R]
    for q in rq: qphi(q)
    if R == 0: e(f"s_waitcnt lgkmcnt({DEPTH})")
    if R == 1: stamp("q1")
    if rq: e("s_nop 1")
    for t in range(4):
        a = QB + (R*4 + t)*4
        e(f"v_mfma_f32_16x16x32_bf16 v[80:83], v[{a}:{a+3}], v[{zf[t]}:{zf[t]+3}], " + ("0" if t == 0 else "v[80:83]"))
    d = 80
    den = [f"v_add_f32 v{d+j}, s31, v{d+j}" for j in range(4)]
    den += [f"v_cvt_pk_bf16_f32 v{d}, v{d}, v{d+1}", f"v_cvt_pk_bf16_f32 v{d+2}, v{d+2}, v{d+3}",
            f"v_and_b32 v{d+1}, s32, v{d}", f"v_and_b32 v{d+3}, s32, v{d+2}",
            f"v_lshlrev_b32 v{d}, 16, v{d}", f"v_lshlrev_b32 v{d+2}, 16, v{d+2}"]
    den += [f"v_rcp_f32 v{d+j}, v{d+j}" for j in range(4)]
    ob = lambda j: 28 + 4*j
    def epi(p):
        o = []
        for j in range(4):
            o += [f"v_mul_f32 v{acc(T)+j}, v{acc(T)+j}, v{d+j}" for T in (2*p, 2*p+1)]
            o.append(f"v_cvt_pk_bf16_f32 v{ob(j)+p}, v{acc(2*p)+j}, v{acc(2*p+1)+j}")
        return o
    fill = [(len(L) + 9, s) for s in den]
    for k in range(32):
        t, T = frs[k]
        if R == 0: e(f"s_waitcnt lgkmcnt({min(32, k + DEPTH) - k - 1})")
        a = QB + (R*4 + t)*4; dd = acc(T)
        if not ("nomf" in A.exp and t & 1): e(f"v_mfma_f32_16x16x32_bf16 v[{dd}:{dd+3}], v[{a}:{a+3}], v[{96+4*k}:{99+4*k}], " + ("0" if t == 0 else f"v[{dd}:{dd+3}]"))
        last = len(L)
        if A.ord and k % 8 == 7 and k < 31: fill += [(len(L) + 9, s) for s in epi(k >> 3)]
        if R == 0 and k + DEPTH < 32: rd(k + DEPTH)
        for _ in range(2 if A.ord else 1):
            if fill and fill[0][0] <= len(L):
                s_ = fill.pop(0)[1]; e(s_)
                if "rcp" in s_: break
    for _, s_ in fill: e(s_)
    stamp(f"m{R}")
    if A.ord:
        n = 8 - (len(L) - last)
        if n > 0: e(f"s_nop {n - 1}")
        ep = epi(3)
        for j in range(4):
            for s_ in ep[3*j:3*j+3]: e(s_)
            if "nost" not in A.exp: vop("st", f"buffer_store_dwordx4 v[{ob(j)}:{ob(j)+3}], v14, {sO}, s3 offen offset:{j*256} {A.of}")
        e("s_nop 1")
    else:
        e("s_nop 1")
        for j in range(4):
            for T in range(8): e(f"v_mul_f32 v{acc(T)+j}, v{acc(T)+j}, v{d+j}")
            o = 84 + 4*(j % 3)
            for p in range(4): e(f"v_cvt_pk_bf16_f32 v{o+p}, v{acc(2*p)+j}, v{acc(2*p+1)+j}")
            vop("st", f"buffer_store_dwordx4 v[{o}:{o+3}], v14, {sO}, s3 offen offset:{j*256} {A.of}")
    if R == 0:
        e("s_add_u32 s3, s3, 4096")
        if A.prio: e("s_setprio 0")
        stamp("r0")
stamp("p2")
if A.stamps:
    e("s_waitcnt vmcnt(0)"); stamp("end"); stamps_out()
lab(f"{NAME}_end")
e("s_endpgm")
c("flag not seen yet: wait; a peer may also have published before the snapshot was taken")
lab(f"{NAME}_fslow")
e("v_cmp_eq_u32 vcc, v128, v130"); e(f"s_cbranch_vccnz {NAME}_fs_x")
slow(f"{NAME}_fs_i")
e(f"s_cmp_ge_u32 s54, {BOUND}"); e(f"s_cbranch_scc1 {NAME}_fok")
e("s_lshl_b32 s5, s35, 3"); e("s_add_u32 s5, s5, s4"); e("v_mov_b32 v126, s5")
e("global_load_ubyte v126, v126, s[28:29] sc1"); e("s_waitcnt vmcnt(0)")
e("v_and_b32 v129, 15, v126")
e("v_cmp_ne_u32 vcc, 0, v126"); e(f"s_cbranch_vccnz {NAME}_fs_x")
lab(f"{NAME}_fs_i")
e(f"buffer_load_dwordx2 v[128:129], v11, {sW}, s51 offen sc1"); e("s_waitcnt vmcnt(0)")
e(f"s_branch {NAME}_fslow")
lab(f"{NAME}_fs_x")
e("v_cmp_eq_u32 vcc, v129, v131"); e(f"s_cbranch_vccnz {NAME}_fok")
e("v_mov_b32 v126, 1"); e("ds_write_b32 v132, v126"); e(f"s_branch {NAME}_fok")
def gbar(p, nm):
    e("s_waitcnt vmcnt(0)"); e("s_barrier")
    e("s_add_u32 s33, s33, 16"); e("v_mov_b32 v126, s34"); e("v_mov_b32 v127, s33")
    e("s_cmp_lg_u32 s4, 0"); e(f"s_cbranch_scc1 {NAME}_{nm}_l")
    e("s_mov_b64 exec, 1"); e("global_store_byte v126, v127, s[28:29] sc1"); e("s_mov_b64 exec, -1")
    lab(f"{NAME}_{nm}_l")
    e("v_and_b32 v126, 7, v1"); e("v_lshl_add_u32 v126, s35, 3, v126")
    e("global_load_ubyte v126, v126, s[28:29] sc1"); e("s_add_u32 s54, s54, 1"); e("s_waitcnt vmcnt(0)")
    e(f"v_cmp_gt_u32 vcc, {0x80 + 16*p}, v126"); e(f"s_cbranch_vccz {NAME}_{nm}_d")
    e(f"s_cmp_lt_u32 s54, {BOUND}"); e(f"s_cbranch_scc1 {NAME}_{nm}_l")
    lab(f"{NAME}_{nm}_d")
c("the workgroups of this head are on different dies: exchange through memory, in a separate area")
lab(f"{NAME}_fb1")
e(f"s_add_u32 s24, s46, {ALT}"); e("s_addc_u32 s25, s47, 0"); e("s_mov_b32 s96, s24"); e("s_mov_b32 s97, s25"); e(f"s_mov_b32 s26, {(256 << 20) - ALT}")
e_store("sc1"); z_store("sc1", "fbz")
l_store("sc1")
gbar(1, "gb1")
e(f"s_branch {NAME}_snd2")
lab(f"{NAME}_fsc")
e(f"buffer_store_dwordx4 v[76:79], v10, {sW}, s63 offen sc1"); e(f"s_branch {NAME}_fsc_x")
for r in "o":
    lab(f"{NAME}_gb2{r}"); gbar(2, f"gb2{r}i"); e(f"s_branch {NAME}_gb2{r}_x")
L += tailcode

head = HDR + f"; @launch grid=(256,1,1) block=(512,1,1) lds={LDS}\n"
out = head + '.amdgcn_target "amdgcn-amd-amdhsa--gfx950"\n.text\n' + "\n".join(L) + '\n.section .rodata,"a"\n'
out += f""".p2align 6
.amdhsa_kernel {NAME}
  .amdhsa_next_free_vgpr 256
  .amdhsa_next_free_sgpr 102
  .amdhsa_accum_offset 256
  .amdhsa_group_segment_fixed_size 0
  .amdhsa_kernarg_size 48
  .amdhsa_user_sgpr_count 2
  .amdhsa_user_sgpr_kernarg_segment_ptr 1
  .amdhsa_system_sgpr_workgroup_id_x 1
  .amdhsa_float_denorm_mode_32 3
.end_amdhsa_kernel
"""
if A.stamps: out = out.replace(".amdgcn_target", "; stamps: " + ",".join(stnames) + "\n.amdgcn_target", 1)
open(A.o, "w").write(out)
print("wrote", A.o, stnames)
```
